```python
import torch

def _softmax(x, axis=-1):
    return torch.softmax(x, dim=axis)
def _gelu(x):
    return torch.nn.functional.gelu(x, approximate="tanh")
def _silu(x):
    return torch.nn.functional.silu(x)
def _sigmoid(x):
    return torch.sigmoid(x)
def _layernorm(x, axis=-1, eps=1e-5):
    m = x.mean(dim=axis, keepdim=True)
    v = x.var(dim=axis, keepdim=True, unbiased=False)
    return (x - m) / torch.sqrt(v + eps)
def _scatter_add(tgt, idx, src, axis=0):
    return tgt.clone().index_add_(axis, idx, src)
def _segment_sum(src, seg, n):
    out = torch.zeros((n,) + src.shape[1:], dtype=src.dtype)
    return out.index_add_(0, seg, src)
def _pad(x, pw):
    flat = tuple(v for pair in reversed(pw) for v in pair)
    return torch.nn.functional.pad(x, flat)

kernel_name = 'interleave_layers__ssm_conv_h3__glu_gated_reglu__prompt'

def setup_inputs():

    _w = (lambda a: (lambda t: t.to(torch.bfloat16) if t.is_floating_point() else t)(torch.as_tensor(a)))
    def _A_setup():
        B, S, D = 1, 2048, 448
        ks = 4
        return {
            "q": _w((lambda *s: torch.randn(*s, dtype=torch.bfloat16) * 0.05)(B, S, D)),
            "k": _w((lambda *s: torch.randn(*s, dtype=torch.bfloat16) * 0.2)(B, S, D)),
            "v": _w((lambda *s: torch.randn(*s, dtype=torch.bfloat16) * 0.2)(B, S, D)),
            "shift_k": _w((lambda *s: torch.randn(*s, dtype=torch.bfloat16) * 0.2)(D, ks) * 0.5),
            "ssm_k": _w((lambda *s: torch.randn(*s, dtype=torch.bfloat16) * 0.2)(D, S) * (1.0 / S ** 0.5)),
            "ssm_D": _w((lambda *s: torch.randn(*s, dtype=torch.bfloat16) * 0.2)(D)),
        }
    _A_in = _A_setup()

    def _B_setup():
        B, S, D, F = 1, 2048, 448, 1792
        return {
            "x": _w((lambda *s: torch.randn(*s, dtype=torch.bfloat16) * 0.05)(B, S, D)),
            "W_gate": _w((lambda *s: torch.randn(*s, dtype=torch.bfloat16) * 0.2)(D, F) * (2.0 / D) ** 0.5),
            "W_up": _w((lambda *s: torch.randn(*s, dtype=torch.bfloat16) * 0.2)(D, F) * (2.0 / D) ** 0.5),
            "W_down": _w((lambda *s: torch.randn(*s, dtype=torch.bfloat16) * 0.2)(F, D) * (1.0 / F) ** 0.5),
        }
    _B_in = _B_setup()

    return {
        "A_q": _A_in["q"],
        "A_k": _A_in["k"],
        "A_v": _A_in["v"],
        "A_shift_k": _A_in["shift_k"],
        "A_ssm_k": _A_in["ssm_k"],
        "A_ssm_D": _A_in["ssm_D"],
        "B_x": _B_in["x"],
        "B_W_gate": _B_in["W_gate"],
        "B_W_up": _B_in["W_up"],
        "B_W_down": _B_in["W_down"],
    }

def reference(A_q, A_k, A_v, A_shift_k, A_ssm_k, A_ssm_D, B_x, B_W_gate, B_W_up, B_W_down):
    def _A_ref(q, k, v, shift_k, ssm_k, ssm_D):
        B, S, D = q.shape
        ks = shift_k.shape[-1]
        k_pad = _pad(k, ((0, 0), (ks - 1, 0), (0, 0)))
        k_shift = torch.zeros_like(k)
        for t in range(ks):
            k_shift = k_shift + k_pad[:, t:t + S, :] * shift_k[:, ks - 1 - t][None, None, :]
        kv = k_shift * v
        L = 2 * S
        kv_pad = _pad(kv, ((0, 0), (0, S), (0, 0)))
        kf_pad = _pad(ssm_k, ((0, 0), (0, S)))
        kv_f = (lambda x, axes=(-2,-1): torch.fft.rfft2(x.float(), dim=axes))(kv_pad[:, None, :, :], axes=(1, 2))
        kf_f = (lambda x, axes=(-2,-1): torch.fft.rfft2(x.float(), dim=axes))(kf_pad[:, None, :], axes=(1, 2))
        kf_f = (lambda x, *d: x.permute(*d))(kf_f, 1, 2, 0)
        y_f = kv_f * kf_f[None, :, :, :]
        y = (lambda x, s, axes=(-2,-1): torch.fft.irfft2(x, s=s, dim=axes).to(torch.bfloat16))(y_f, (1, L), axes=(1, 2))[:, 0, :S, :]
        y = y + kv * ssm_D[None, None, :]
        return q * y

    def _B_ref(x, W_gate, W_up, W_down):
        gate = torch.einsum("bsd,df->bsf", x, W_gate)
        up = torch.einsum("bsd,df->bsf", x, W_up)
        gate = gate * (lambda x, dt: x.to(dt))(gate > 0, gate.dtype)
        h = gate * up
        return torch.einsum("bsf,fd->bsd", h, W_down)

    x = A_q
    x = x + _A_ref(_layernorm(x, axis=-1), A_k, A_v, A_shift_k, A_ssm_k, A_ssm_D)
    x = x + _B_ref(_layernorm(x, axis=-1), B_W_gate, B_W_up, B_W_down)
    x = x + _A_ref(_layernorm(x, axis=-1), A_k, A_v, A_shift_k, A_ssm_k, A_ssm_D)
    x = x + _B_ref(_layernorm(x, axis=-1), B_W_gate, B_W_up, B_W_down)
    return x
```

```python
import re

TRANS = ("v_exp_f32", "v_log_f32", "v_rcp_f32", "v_rsq_f32", "v_sqrt_f32", "v_sin_f32", "v_cos_f32")

_reg_re = re.compile(r"^(-|abs\()?([vas])(\d+|\[(\d+):(\d+)\])\)?$")


def regs_of(op):
    op = op.strip()
    if op in ("vcc", "vcc_lo", "vcc_hi"):
        return {("vcc", 0)}
    if op in ("exec", "exec_lo", "exec_hi"):
        return {("exec", 0)}
    if op == "m0":
        return {("m0", 0)}
    m = _reg_re.match(op)
    if not m:
        return set()
    k = m.group(2)
    if m.group(4) is not None:
        return {(k, i) for i in range(int(m.group(4)), int(m.group(5)) + 1)}
    return {(k, int(m.group(3)))}


class Ins:
    def __init__(self, text):
        self.text = text
        t = text.split(";")[0].strip()
        parts = t.split(None, 1)
        self.mn = parts[0]
        rest = parts[1] if len(parts) > 1 else ""
        ops, cur, depth = [], "", 0
        for ch in rest:
            if ch == "[":
                depth += 1
            if ch == "]":
                depth -= 1
            if ch == "," and depth == 0:
                ops.append(cur.strip())
                cur = ""
            else:
                cur += ch
        if cur.strip():
            ops.append(cur.strip())
        self.mods = ""
        if ops:
            sp = ops[-1].split(None, 1)
            ops[-1] = sp[0]
            if len(sp) > 1:
                self.mods = sp[1]
        self.ops = ops
        self.classify()

    def classify(self):
        mn, ops = self.mn, self.ops
        R = [regs_of(o) for o in ops]
        self.is_mfma = mn.startswith("v_mfma")
        self.is_valu = mn.startswith("v_") and not self.is_mfma
        self.is_vmem = mn.startswith("buffer_") or mn.startswith("global_")
        self.is_ds = mn.startswith("ds_")
        self.is_salu = mn.startswith("s_")
        self.is_trans = any(mn.startswith(t) for t in TRANS)
        self.is_dot = mn.startswith("v_dot")
        self.is_dpp = "_dpp" in mn or "row_" in self.mods or "quad_perm" in self.mods
        self.is_perml = mn.startswith("v_permlane")
        self.is_lds_dma = self.is_vmem and re.search(r"\blds\b", self.mods) is not None
        self.dst, self.src = set(), set()
        self.srcA = self.srcB = self.srcC = set()
        self.store_data = set()
        self.passes = 0
        if self.is_mfma:
            self.dst = R[0]
            self.srcA, self.srcB, self.srcC = R[1], R[2], R[3]
            self.src = R[1] | R[2] | R[3]
            self.passes = 8 if "32x32x16" in mn else 4
            assert "32x32x16" in mn or "16x16x32" in mn, mn
        elif self.is_valu:
            if self.is_perml:
                self.dst = R[0] | R[1]
                self.src = R[0] | R[1]
            elif mn.startswith("v_cmp"):
                self.dst = R[0]
                self.src = set().union(*R[1:])
            elif "_co_" in mn:
                self.dst = R[0] | R[1]
                self.src = set().union(*R[2:])
            else:
                self.dst = R[0]
                self.src = set().union(*R[1:]) if len(R) > 1 else set()
                if mn.startswith("v_fmac") or mn.startswith("v_dot2c") or mn.startswith("v_pk_fmac"):
                    self.src |= R[0]
                if mn.startswith("v_cndmask") and len(ops) == 3:
                    self.src |= {("vcc", 0)}
                if mn.startswith("v_writelane"):
                    self.src |= R[0]
                if self.is_dot and len(R) == 4:
                    self.srcC = R[3]
                if mn.startswith("v_dot2c"):
                    self.srcC = R[0]
        elif self.is_vmem:
            if "_store" in mn or ("atomic" in mn):
                self.src = set().union(*R) if R else set()
                if mn.startswith("buffer_"):
                    self.store_data = R[0]
                else:
                    self.store_data = R[1]
                if "atomic" in mn and re.search(r"\bsc0\b", self.mods):
                    self.dst = R[0]
            elif self.is_lds_dma:
                self.src = set().union(*R) | {("m0", 0)}
            elif mn in ("buffer_wbl2", "buffer_inv"):
                pass
            else:
                self.dst = R[0]
                self.src = set().union(*R[1:])
        elif self.is_ds:
            if mn.startswith("ds_write") or mn.startswith("ds_add"):
                self.src = set().union(*R)
            else:
                self.dst = R[0]
                self.src = set().union(*R[1:])
                if "d16" in mn:
                    self.src |= R[0]
        elif self.is_salu:
            if mn.startswith("s_cmp") or mn.startswith("s_cbranch") or mn in (
                "s_waitcnt", "s_barrier", "s_nop", "s_endpgm", "s_branch", "s_sleep", "s_setprio"):
                self.src = set().union(*R) if R else set()
            else:
                self.dst = R[0] if R else set()
                self.src = set().union(*R[1:]) if len(R) > 1 else set()
                if "saveexec" in mn:
                    self.dst |= {("exec", 0)}
        self.states = 1
        if mn == "s_nop":
            self.states = int(ops[0], 0) + 1


def vec(rs):
    return {r for r in rs if r[0] in ("v", "a")}


def sca(rs):
    return {r for r in rs if r[0] in ("s", "vcc")}


def need(p, c):
    n = 0
    if p.is_valu:
        pv = vec(p.dst)
        ps = sca(p.dst)
        if c.is_mfma and pv & c.src:
            n = max(n, 2)
        if ps:
            if c.is_vmem and ps & c.src:
                n = max(n, 5)
            if c.is_valu and ps & c.src:
                n = max(n, 4 if (c.mn.startswith("v_readlane") or c.mn.startswith("v_writelane")) else 2)
            if c.is_salu and ps & c.src:
                n = max(n, 1)
        if pv:
            if (c.mn.startswith("v_readlane") or c.mn.startswith("v_readfirstlane")) and pv & c.src:
                n = max(n, 1)
            if c.is_perml and pv & c.src:
                n = max(n, 2)
            if c.is_valu and c.is_dpp and pv & c.src:
                n = max(n, 2)
            if p.is_trans and c.is_valu and not c.is_trans and pv & c.src:
                n = max(n, 1)
            if p.is_trans and (c.is_mfma or c.is_vmem or c.is_ds) and pv & c.src:
                n = max(n, 2)
            if "sdwa" in p.mn and c.is_valu and pv & (c.src | c.dst):
                n = max(n, 1)
            if p.is_dot:
                if c.mn == p.mn and c.is_dot:
                    if pv & (c.src - c.srcC):
                        n = max(n, 3)
                elif pv & (c.src | c.dst):
                    n = max(n, 3)
    if p.is_mfma:
        big = p.passes == 8
        if c.is_mfma:
            if p.dst & (c.srcA | c.srcB):
                n = max(n, 12 if big else 8)
            if p.dst & c.srcC:
                if p.dst == c.srcC and p.passes == c.passes:
                    pass
                else:
                    n = max(n, 10 if big else 6)
            elif p.dst & c.dst:
                n = max(n, 12 if big else 8)
        elif c.is_valu or c.is_vmem or c.is_ds:
            if p.dst & (c.src | c.dst):
                n = max(n, 12 if big else 8)
        if c.is_valu and p.srcC & c.dst:
            n = max(n, 7 if big else 3)
    if p.is_salu and ("m0", 0) in p.dst and c.is_lds_dma:
        n = max(n, 1)
    if p.is_vmem and p.store_data and len(p.store_data) >= 3:
        if p.store_data & c.dst:
            n = max(n, 2 if c.is_valu else 1)
    return n


class Asm:
    def __init__(self):
        self.lines = []

    def __call__(self, s):
        for ln in s.strip("\n").split("\n"):
            ln = ln.strip()
            if ln:
                self.lines.append(ln)

    def label(self, name):
        self.lines.append(name + ":")

    def comment(self, s):
        self.lines.append("; " + s)

    def raw(self, s):
        self.lines.append("@RAW " + s)

    def finish(self):
        out = []
        hist = []
        for ln in self.lines:
            if ln.startswith("@RAW "):
                out.append(ln[5:])
                continue
            if ln.startswith(";") or ln.endswith(":") or ln.startswith("."):
                out.append(ln if (ln.endswith(":") or ln.startswith(".")) else "    " + ln)
                continue
            c = Ins(ln)
            dist = 0
            pad = 0
            for p in reversed(hist):
                nn = need(p, c)
                if nn > dist:
                    pad = max(pad, nn - dist)
                dist += p.states
                if dist >= 12:
                    break
            while pad > 0:
                k = min(pad, 16)
                nop = Ins(f"s_nop {k-1}")
                out.append(f"    s_nop {k-1}")
                hist.append(nop)
                pad -= k
            out.append("    " + ln)
            hist.append(c)
            if len(hist) > 40:
                hist = hist[-40:]
        return "\n".join(out) + "\n"


def vr(a, n=1, k="v"):
    return f"{k}{a}" if n == 1 else f"{k}[{a}:{a+n-1}]"


def ar(a, n=1):
    return vr(a, n, "a")


def sr(a, n=1):
    return vr(a, n, "s")
```

```python
from asmlib import *
from layout import *
from k_prep import KA, OOB, srd, unpack, bf16r, stamp, stamp_flush

CS = 4160
CHS = 4 * CS
HR0 = 2 * CHS
HRS = 4608
YB0 = HR0 + 2 * HRS
DUMMY = YB0 + 8192
CONV_LDS = DUMMY + 3 * CS + 64
CONV_GRID = 224


class LdsQ:
    def __init__(self, a):
        self.a = a
        self.n = 0
        self.done = 0

    def issue(self, text):
        self.a(text)
        self.n += 1
        return self.n - 1

    def wait(self, idx):
        if idx < self.done:
            return
        after = self.n - 1 - idx
        after = min(after, 15)
        self.a(f"s_waitcnt lgkmcnt({after})")
        self.done = self.n - after


def conv_main(a, Ts, vA, vB, accbase, abase, nslots=6, PD=3):
    q = LdsQ(a)
    nsteps = 8 * (max(Ts) + 1)
    bload = {}
    aload = {}

    def prefetch(i):
        if i >= nsteps:
            return
        s = abase + 4 * (i % nslots)
        q.issue(f"ds_read_b64 v[{s}:{s+1}], v{vA} offset:{64*i}")
        aload[i] = q.issue(f"ds_read_b64 v[{s+2}:{s+3}], v{vA} offset:{64*i+8}")
        for T in Ts:
            if i < 8 * (T + 1):
                c = 8 * T - i
                if c not in bload:
                    r = 4 * (c + 7)
                    bload[c] = q.issue(f"ds_read_b128 a[{r}:{r+3}], v{vB} offset:{64*(56-c)}")

    for i in range(PD):
        prefetch(i)
    for i in range(nsteps):
        prefetch(i + PD)
        s = abase + 4 * (i % nslots)
        for ti, T in enumerate(Ts):
            if i < 8 * (T + 1):
                c = 8 * T - i
                q.wait(max(aload[i], bload[c]))
                r = 4 * (c + 7)
                acc = accbase + 4 * ti
                src = "0" if i == 0 else f"v[{acc}:{acc+3}]"
                a(f"v_mfma_f32_16x16x32_bf16 v[{acc}:{acc+3}], v[{s}:{s+3}], a[{r}:{r+3}], {src}")


def conv_epi1(a, Ts, accbase):
    for ti, T in enumerate(Ts):
        a(f"ds_read_b64 v[{64+2*ti}:{65+2*ti}], v20 offset:{512*T}")
    for ti, T in enumerate(Ts):
        acc = accbase + 4 * ti
        a(f"s_waitcnt lgkmcnt({3-ti})")
        for r in range(4):
            unpack(a, 72 + r, 64 + 2 * ti + (r >> 1), r & 1)
        for r in range(4):
            a(f"v_mul_f32 v{72+r}, s40, v{72+r}")
        a("v_cvt_pk_bf16_f32 v76, v72, v73")
        a("v_cvt_pk_bf16_f32 v77, v74, v75")
        a(f"v_cvt_pk_bf16_f32 v78, v{acc}, v{acc+1}")
        a(f"v_cvt_pk_bf16_f32 v79, v{acc+2}, v{acc+3}")
        for r in range(4):
            unpack(a, 72 + r, 76 + (r >> 1), r & 1)
            unpack(a, 80 + r, 78 + (r >> 1), r & 1)
        for r in range(4):
            a(f"v_add_f32 v{72+r}, v{72+r}, v{80+r}")
        a(f"v_cvt_pk_bf16_f32 v{84+2*ti}, v72, v73")
        a(f"v_cvt_pk_bf16_f32 v{85+2*ti}, v74, v75")
        a(f"ds_write_b64 v21, v[{84+2*ti}:{85+2*ti}] offset:{512*T}")


def gen_conv(a, name="conv_kernel"):
    a.label(name)
    a(f"s_cmp_ge_u32 s2, {CONV_GRID}")
    a("s_cbranch_scc1 conv_exit")
    a(f"s_load_dwordx2 s[4:5], s[0:1], {KA['ws']}")
    a(f"s_load_dwordx4 s[24:27], s[0:1], {KA['ssmk']}")
    stamp(a, 0)
    a("v_lshrrev_b32 v1, 6, v0")
    a("v_readfirstlane_b32 s3, v1")
    a("v_and_b32 v2, 63, v0")
    a("s_and_b32 s20, s2, 7")
    a("s_lshr_b32 s21, s2, 5")
    a("s_lshl_b32 s21, s21, 3")
    a("s_add_u32 s20, s20, s21")
    a("s_lshl_b32 s20, s20, 2")
    a("s_bfe_u32 s21, s2, 0x20003")
    a("s_add_u32 s20, s20, s21")
    a("s_lshl_b32 s21, s20, 1")
    a("v_lshlrev_b32 v3, 4, v0")
    a(f"s_mul_i32 s22, s21, {KVT_STRIDE}")
    a(f"s_add_u32 s23, s22, {KVT_STRIDE}")
    a("s_lshl_b32 s28, s21, 12")
    a("s_add_u32 s29, s28, 4096")
    a("s_lshl_b32 s30, s20, 2")
    a("s_waitcnt lgkmcnt(0)")
    a("s_load_dword s41, s[26:27], s30")
    srd(a, 8, 4, WS_KVT, D * KVT_STRIDE)
    srd(a, 12, 24, 0, D * S * 2)
    srd(a, 16, 4, WS_X0F, XF_BYTES)
    srd(a, 32, 4, WS_XN0F, XF_BYTES)
    for ch in range(2):
        for k in range(3):
            r = 64 + 12 * ch + 4 * k
            a(f"buffer_load_dwordx4 v[{r}:{r+3}], v3, s[8:11], s{22+ch} offen offset:{4*k}")
    a("v_lshrrev_b32 v4, 1, v0")
    a(f"v_mul_u32_u24 v4, {KVT_STRIDE}, v4")
    a("v_and_b32 v5, 1, v0")
    a("v_lshl_add_u32 v4, v5, 4, v4")
    a("v_add_u32 v4, 4096, v4")
    a("v_cmp_gt_u32 vcc, 4, v0")
    a(f"v_mov_b32 v6, {OOB}")
    a("v_cndmask_b32 v4, v6, v4, vcc")
    for k in range(3):
        r = 88 + 4 * k
        a(f"buffer_load_dwordx4 v[{r}:{r+3}], v4, s[8:11], s22 offen offset:{4*k}")
    a("v_lshrrev_b32 v7, 1, v0")
    a(f"v_mul_u32_u24 v7, {CHS}, v7")
    a("v_lshl_add_u32 v7, v5, 4, v7")
    a("v_add_u32 v7, 4096, v7")
    a(f"v_mov_b32 v6, {DUMMY}")
    a("v_cndmask_b32 v7, v6, v7, vcc")
    for ch in range(2):
        r = 100 + 4 * ch
        a(f"buffer_load_dwordx4 v[{r}:{r+3}], v3, s[12:15], s{28+ch} offen")
    a("v_lshrrev_b32 v8, 5, v0")
    a("s_movk_i32 s31, 28672")
    a("v_mul_lo_u32 v8, v8, s31")
    a("v_and_b32 v9, 31, v0")
    a("v_lshl_add_u32 v8, v9, 4, v8")
    a("s_lshr_b32 s31, s21, 3")
    a("s_lshl_b32 s31, s31, 9")
    a("s_and_b32 s36, s21, 7")
    a("s_lshl_b32 s36, s36, 1")
    a("s_add_u32 s31, s31, s36")
    a("v_add_u32 v8, s31, v8")
    for i in range(8):
        a(f"s_mov_b32 s{44+i}, {i*8*28672}")
    for i in range(8):
        a(f"buffer_load_dword v{32+i}, v8, s[16:19], s{44+i} offen")
        a(f"buffer_load_dword v{40+i}, v8, s[32:35], s{44+i} offen")
    a("v_mov_b32 v108, 0")
    a("v_mov_b32 v109, 0")
    a("v_mov_b32 v110, 0")
    a("v_mov_b32 v111, 0")
    a("v_cmp_lt_u32 vcc, 29, v0")
    a(f"v_mov_b32 v9, {HR0+4096}")
    a(f"v_mov_b32 v10, {HR0+HRS+4096-30*16}")
    a("v_cndmask_b32 v9, v9, v10, vcc")
    a("v_add_u32 v9, v9, v3")
    a("v_cmp_gt_u32 vcc, 60, v0")
    a(f"v_mov_b32 v10, {DUMMY}")
    a("v_cndmask_b32 v9, v10, v9, vcc")
    a("ds_write_b128 v9, v[108:111]")
    a("s_and_b32 s37, s3, 1")
    a("v_and_b32 v10, 15, v2")
    a("v_lshrrev_b32 v11, 4, v2")
    a("v_add_u32 v12, 1, v10")
    a("v_and_b32 v13, 3, v12")
    a(f"v_mul_u32_u24 v13, {CS}, v13")
    a("v_lshl_add_u32 v12, v11, 3, v12")
    a("v_and_b32 v12, 0x7c, v12")
    a("v_lshl_add_u32 v13, v12, 1, v13")
    a(f"s_mul_i32 s38, s37, {CHS}")
    a("v_add_u32 v18, s38, v13")
    a("v_lshlrev_b32 v12, 4, v11")
    a("v_lshlrev_b32 v13, 5, v10")
    a("v_sub_u32 v12, v12, v13")
    a(f"s_mul_i32 s39, s37, {HRS}")
    a(f"s_add_u32 s39, s39, {HR0 + 2*2032 - 64*56}")
    a("v_add_u32 v19, s39, v12")
    a("v_lshlrev_b32 v12, 3, v11")
    a("v_lshl_add_u32 v12, v10, 5, v12")
    a("s_add_u32 s38, s38, 32")
    a("v_add_u32 v20, s38, v12")
    a("s_lshl_b32 s39, s37, 12")
    a(f"s_add_u32 s39, s39, {YB0}")
    a("v_add_u32 v21, s39, v12")
    a(f"v_sub_u32 v14, {HR0 + 255*16}, v3")
    for ch in range(3):
        r = 64 + 12 * ch
        a(f"s_waitcnt vmcnt({24 - 3*ch})")
        for j in range(4):
            a(f"v_alignbyte_b32 v{112+j}, v{r+4+j}, v{r+j}, 2")
            a(f"v_alignbyte_b32 v{116+j}, v{r+8+j}, v{r+4+j}, 2")
        if ch < 2:
            ad, off = 3, ch * CHS
        else:
            ad, off = 7, 0
        a(f"ds_write_b128 v{ad}, v[{r}:{r+3}] offset:{off}")
        a(f"ds_write_b128 v{ad}, v[112:115] offset:{off+CS}")
        a(f"ds_write_b128 v{ad}, v[{r+4}:{r+7}] offset:{off+2*CS}")
        a(f"ds_write_b128 v{ad}, v[116:119] offset:{off+3*CS}")
        a("s_nop 1")
    for ch in range(2):
        r = 100 + 4 * ch
        a(f"s_waitcnt vmcnt({17 - ch})")
        for j in range(4):
            a(f"v_alignbit_b32 v{120+4*ch+j}, v{r+3-j}, v{r+3-j}, 16")
        a(f"ds_write_b128 v14, v[{120+4*ch}:{123+4*ch}] offset:{ch*HRS}")
    a("s_waitcnt lgkmcnt(0)")
    a("s_lshl_b32 s40, s41, 16")
    a("s_and_b32 s41, s41, 0xffff0000")
    a("s_cmp_eq_u32 s37, 0")
    a("s_cselect_b32 s40, s40, s41")
    stamp(a, 1)
    a("s_barrier")
    stamp(a, 2)
    a("s_cmp_ge_u32 s3, 2")
    a("s_cbranch_scc1 conv_set1")
    T0, T1 = [7, 6, 1, 0], [5, 4, 3, 2]
    conv_main(a, T0, 18, 19, 48, 96)
    stamp(a, 3)
    a("s_nop 7")
    conv_epi1(a, T0, 48)
    a("s_branch conv_join")
    a.label("conv_set1")
    conv_main(a, T1, 18, 19, 48, 96)
    stamp(a, 3)
    a("s_nop 7")
    conv_epi1(a, T1, 48)
    a.label("conv_join")
    srd(a, 8, 4, WS_YF, XF_BYTES)
    srd(a, 12, 4, WS_X1F, XF_BYTES)
    a("v_lshlrev_b32 v9, 1, v0")
    a(f"v_add_u32 v9, {YB0}, v9")
    a("s_waitcnt lgkmcnt(0)")
    a("s_barrier")
    stamp(a, 4)
    for i in range(8):
        a(f"ds_read_u16 v{64+i}, v9 offset:{512*i}")
        a(f"ds_read_u16 v{88+i}, v9 offset:{512*i+4096}")
    a("s_waitcnt vmcnt(0)")
    for i in range(8):
        a(f"s_waitcnt lgkmcnt({min(15, 14-2*i)})")
        a(f"v_lshlrev_b32 v72, 16, v{64+i}")
        a(f"v_lshlrev_b32 v73, 16, v{88+i}")
        a(f"v_or_b32 v{64+i}, v{64+i}, v73")
        a(f"buffer_store_dword v{64+i}, v8, s[8:11], s{44+i} offen")
        unpack(a, 74, 40 + i, 0)
        unpack(a, 75, 40 + i, 1)
        a("v_mul_f32 v72, v72, v74")
        a("v_mul_f32 v73, v73, v75")
        a("v_cvt_pk_bf16_f32 v76, v72, v73")
        unpack(a, 72, 76, 0)
        unpack(a, 73, 76, 1)
        unpack(a, 74, 32 + i, 0)
        unpack(a, 75, 32 + i, 1)
        a("v_add_f32 v72, v72, v74")
        a("v_add_f32 v73, v73, v75")
        a(f"v_cvt_pk_bf16_f32 v{80+i}, v72, v73")
        a(f"buffer_store_dword v{80+i}, v8, s[12:15], s{44+i} offen")
    stamp(a, 5)
    stamp_flush(a, 1)
    a.label("conv_exit")
    a("s_endpgm")
    return dict(name=name, grid=CONV_GRID, block=256, lds=CONV_LDS, vgpr=128, agpr=256, sgpr=100)
```

```python
from asmlib import *
from layout import *
from k_prep import KA, OOB, srd, unpack, bf16r, stamp, stamp_flush, float_hex
from k_conv import LdsQ


class VmQ:
    def __init__(self, a):
        self.a = a
        self.n = 0
        self.done = 0

    def issue(self, text):
        self.a(text)
        self.n += 1
        assert self.n - self.done <= 63, "vmcnt overflow"
        return self.n - 1

    def wait(self, idx):
        if idx < self.done:
            return
        after = min(self.n - 1 - idx, 63)
        self.a(f"s_waitcnt vmcnt({after})")
        self.done = self.n - after


SLOT = 28672
CORR = 5 * SLOT
G1_LDS = CORR + 8192
XB, AB, TB = 16, 128, 240


def ln_scalars(a, s1, s2, t, m_out, r_out):
    for s in (s1, s2):
        a(f"v_mov_b32 v{t}, v{s}")
        a(f"v_permlane32_swap_b32 v{s}, v{t}")
        a(f"v_add_f32 v{s}, v{s}, v{t}")
    a(f"v_mul_f32 v{s1}, {float_hex(1.0/448)}, v{s1}")
    a(f"v_mul_f32 v{s2}, {float_hex(1.0/448)}, v{s2}")
    a(f"v_fma_f32 v{s2}, -v{s1}, v{s1}, v{s2}")
    a(f"v_max_f32 v{s2}, 0, v{s2}")
    bf16r(a, m_out, s1)
    bf16r(a, s2, s2)
    a(f"v_add_f32 v{s2}, {float_hex(1e-5)}, v{s2}")
    bf16r(a, s2, s2)
    a(f"v_sqrt_f32 v{s2}, v{s2}")
    bf16r(a, s2, s2)
    a(f"v_rcp_f32 v{r_out}, v{s2}")


def gen_g1(a, name, layer, kidx):
    a.label(name)
    a("s_cmp_ge_u32 s2, 256")
    a(f"s_cbranch_scc1 {name}_exit")
    a(f"s_load_dwordx2 s[4:5], s[0:1], {KA['ws']}")
    stamp(a, 0)
    a("v_lshrrev_b32 v1, 6, v0")
    a("v_readfirstlane_b32 s3, v1")
    a("v_and_b32 v2, 63, v0")
    a("v_lshlrev_b32 v3, 4, v2")
    a(f"v_add_u32 v4, {2*SLOT}, v3")
    a(f"v_add_u32 v5, {4*SLOT}, v3")
    a("s_and_b32 s20, s2, 7")
    a("s_lshr_b32 s21, s2, 3")
    a("s_and_b32 s22, s21, 15")
    a("s_lshr_b32 s21, s21, 4")
    a("s_lshl_b32 s20, s20, 1")
    a("s_add_u32 s20, s20, s21")
    a("s_lshl_b32 s20, s20, 2")
    a("s_add_u32 s20, s20, s3")
    a("s_mul_i32 s23, s20, 28672")
    a("s_mul_i32 s24, s22, 207872")
    a("s_mul_i32 s25, s3, 7168")
    a("s_add_u32 s26, s24, s25")
    a("s_mov_b32 s34, 0x3f803f80")
    a("s_waitcnt lgkmcnt(0)")
    srd(a, 8, 4, WS_X1F if layer == 0 else WS_X2F, XF_BYTES)
    srd(a, 12, 4, WS_W1F, W1F_BYTES)
    srd(a, 16, 4, WS_HF, HF_BYTES)
    if layer == 1:
        srd(a, 36, 4, WS_YF, XF_BYTES)
        srd(a, 40, 4, WS_X3F, XF_BYTES)
    vq = VmQ(a)
    lq = LdsQ(a)
    chunk_last = {}

    def dma_chunk(c):
        slot = c % 5
        a(f"s_add_u32 s27, s26, {c*SLOT}")
        a(f"s_add_u32 s28, s25, {slot*SLOT}")
        a("s_mov_b32 m0, s28")
        for b in range(4):
            vq.issue(f"buffer_load_dwordx4 v3, s[12:15], s27 offen offset:{1024*b} lds")
        a("s_add_u32 s27, s27, 4096")
        a("s_add_u32 s28, s28, 4096")
        a("s_mov_b32 m0, s28")
        for b in range(3):
            chunk_last[c] = vq.issue(f"buffer_load_dwordx4 v3, s[12:15], s27 offen offset:{1024*b} lds")

    def load_frags(base, srdn, tag):
        idx = []
        for ks in range(28):
            if ks % 4 == 0:
                a(f"s_add_u32 s29, s23, {ks*1024}")
            r = base + 4 * ks
            idx.append(vq.issue(f"buffer_load_dwordx4 v[{r}:{r+3}], v3, s[{srdn}:{srdn+3}], s29 offen offset:{1024*(ks%4)}"))
        return idx

    def dma_corr():
        a("s_lshl_b32 s28, s3, 11")
        a(f"s_add_u32 s27, s24, {28*7168}")
        a("s_add_u32 s27, s27, s28")
        a(f"s_add_u32 s28, s28, {CORR}")
        a("s_mov_b32 m0, s28")
        vq.issue("buffer_load_dwordx4 v3, s[12:15], s27 offen lds")
        return vq.issue("buffer_load_dwordx4 v3, s[12:15], s27 offen offset:1024 lds")

    S1, S2, MM, RR = 6, 7, 8, 9
    if layer == 0:
        dma_chunk(0)
        xi = load_frags(XB, 8, "x")
        dma_chunk(1)
        dma_chunk(2)
        dma_chunk(3)
        corr_last = dma_corr()
    else:
        xi = load_frags(XB, 8, "x")
        yi = load_frags(AB, 36, "y")
        dma_chunk(0)
        a(f"v_mov_b32 v{S1}, 0")
        a(f"v_mov_b32 v{S2}, 0")
        for ks in range(28):
            vq.wait(xi[ks])
            for d in range(4):
                r = XB + 4 * ks + d
                a(f"v_dot2_f32_bf16 v{S1}, v{r}, s34, v{S1}")
                a(f"v_dot2_f32_bf16 v{S2}, v{r}, v{r}, v{S2}")
            if ks in (7, 14, 21):
                dma_chunk(ks // 7)
        corr_last = dma_corr()
        stamp(a, 1)
        ln_scalars(a, S1, S2, TB, MM, 10)
        a("v_mov_b32 v11, v10")
        a(f"v_mul_f32 v12, v{MM}, v10")
        a("v_sub_f32 v12, 0, v12")
        a("v_mov_b32 v13, v12")
        for ks in range(28):
            vq.wait(yi[ks])
            for d in range(4):
                rx, ry = XB + 4 * ks + d, AB + 4 * ks + d
                t = TB + 6 * (d & 1)
                unpack(a, t, rx, 0)
                unpack(a, t + 1, rx, 1)
                unpack(a, t + 2, ry, 0)
                unpack(a, t + 3, ry, 1)
                a(f"v_pk_fma_f32 v[{t+4}:{t+5}], v[{t}:{t+1}], v[10:11], v[12:13]")
                a(f"v_pk_fma_f32 v[{t}:{t+1}], v[{t+4}:{t+5}], v[{t+2}:{t+3}], v[{t}:{t+1}]")
                a(f"v_cvt_pk_bf16_f32 v{rx}, v{t}, v{t+1}")
            a(f"s_cmp_lg_u32 s22, {ks & 15}")
            a(f"s_cbranch_scc1 {name}_nx3_{ks}")
            a(f"s_add_u32 s29, s23, {ks*1024}")
            r = XB + 4 * ks
            a(f"buffer_store_dwordx4 v[{r}:{r+3}], v3, s[40:43], s29 offen")
            a.label(f"{name}_nx3_{ks}")
        vq_extra = 2
        stamp(a, 2)
    a(f"v_mov_b32 v{S1}, 0")
    a(f"v_mov_b32 v{S2}, 0")

    def lds_addr(ks, mt):
        if ks == 28:
            return 5, CORR - 4 * SLOT + mt * 1024
        c, kl = ks // 4, ks % 4
        slot = c % 5
        return 3 + slot // 2, (slot % 2) * SLOT + (kl * 7 + mt) * 1024

    aidx = {}

    def read_a(ks, mt):
        vb, off = lds_addr(ks, mt)
        r = 28 * (ks & 1) + 4 * mt
        aidx[(ks, mt)] = lq.issue(f"ds_read_b128 a[{r}:{r+3}], v{vb} offset:{off}")

    def barrier_for(c):
        vq.wait(chunk_last[c])
        a("s_barrier")

    barrier_for(0)
    dma_chunk(4)
    stamp(a, 3)
    for mt in range(7):
        read_a(0, mt)
    for ks in range(28):
        if ks % 4 == 3:
            c = ks // 4
            if c + 1 <= 6:
                barrier_for(c + 1)
                if c >= 1 and c + 4 <= 6:
                    dma_chunk(c + 4)
        if layer == 0:
            vq.wait(xi[ks])
        xr = XB + 4 * ks
        for mt in range(7):
            lq.wait(aidx[(ks, mt)])
            ar_ = 28 * (ks & 1) + 4 * mt
            acc = AB + 16 * mt
            src = "0" if ks == 0 else f"v[{acc}:{acc+15}]"
            a(f"v_mfma_f32_32x32x16_bf16 v[{acc}:{acc+15}], a[{ar_}:{ar_+3}], v[{xr}:{xr+3}], {src}")
            read_a(ks + 1, mt)
            if mt < 4:
                a(f"v_dot2_f32_bf16 v{S1}, v{xr+mt}, s34, v{S1}")
                a(f"v_dot2_f32_bf16 v{S2}, v{xr+mt}, v{xr+mt}, v{S2}")
    stamp(a, 4)
    ln_scalars(a, S1, S2, TB, MM, 10)
    a(f"v_cvt_pk_bf16_f32 v{TB}, -v{MM}, -v{MM}")
    for d in range(1, 4):
        a(f"v_mov_b32 v{TB+d}, v{TB}")
    a("v_mul_f32 v10, v10, v10")
    a("v_mov_b32 v11, v10")
    for mt in range(7):
        lq.wait(aidx[(28, mt)])
        acc = AB + 16 * mt
        a(f"v_mfma_f32_32x32x16_bf16 v[{acc}:{acc+15}], a[{4*mt}:{4*mt+3}], v[{TB}:{TB+3}], v[{acc}:{acc+15}]")
    a("s_mul_i32 s29, s20, 112")
    a("s_mul_i32 s30, s22, 7")
    a("s_add_u32 s29, s29, s30")
    a("s_lshl_b32 s29, s29, 10")
    a("s_add_u32 s30, s29, 4096")
    for mt in range(7):
        acc = AB + 16 * mt
        o = XB + 4 * mt
        for hq in range(2):
            g, u = acc + 8 * hq, acc + 8 * hq + 4
            for r in range(4):
                a(f"v_max_f32 v{g+r}, 0, v{g+r}")
            for p in range(2):
                a(f"v_pk_mul_f32 v[{g+2*p}:{g+2*p+1}], v[{g+2*p}:{g+2*p+1}], v[{u+2*p}:{u+2*p+1}]")
            for p in range(2):
                a(f"v_pk_mul_f32 v[{g+2*p}:{g+2*p+1}], v[{g+2*p}:{g+2*p+1}], v[10:11]")
            for p in range(2):
                a(f"v_cvt_pk_bf16_f32 v{o+2*hq+p}, v{g+2*p}, v{g+2*p+1}")
        so, off = (29, 1024 * mt) if mt < 4 else (30, 1024 * (mt - 4))
        a(f"buffer_store_dwordx4 v[{o}:{o+3}], v3, s[16:19], s{so} offen offset:{off}")
    stamp(a, 5)
    stamp_flush(a, kidx)
    a.label(f"{name}_exit")
    a("s_endpgm")
    return dict(name=name, grid=256, block=256, lds=G1_LDS, vgpr=256, agpr=56, sgpr=100)


G2_LDS = 60 * 1024


def gen_g2(a, name, layer, kidx, NS=6):
    a.label(name)
    a("s_cmp_ge_u32 s2, 256")
    a(f"s_cbranch_scc1 {name}_exit")
    a(f"s_load_dwordx2 s[4:5], s[0:1], {KA['ws']}")
    a(f"s_load_dwordx2 s[6:7], s[0:1], {KA['out']}")
    stamp(a, 0)
    a("v_lshrrev_b32 v1, 6, v0")
    a("v_readfirstlane_b32 s3, v1")
    a("v_and_b32 v2, 63, v0")
    a("v_lshlrev_b32 v3, 4, v2")
    a("v_lshrrev_b32 v4, 4, v2")
    a("v_lshlrev_b32 v4, 9, v4")
    a("v_and_b32 v5, 15, v2")
    a("v_lshl_add_u32 v4, v5, 4, v4")
    a("s_and_b32 s20, s2, 7")
    a("s_lshr_b32 s21, s2, 3")
    a("s_and_b32 s22, s21, 3")
    a("s_lshr_b32 s21, s21, 2")
    a("s_lshl_b32 s20, s20, 3")
    a("s_add_u32 s20, s20, s21")
    a("s_mul_i32 s23, s22, 56")
    a("s_mul_i32 s24, s3, 14")
    a("s_add_u32 s23, s23, s24")
    a("s_mul_i32 s23, s23, 7168")
    a("s_mul_i32 s25, s20, 112")
    a("s_lshl_b32 s24, s24, 1")
    a("s_add_u32 s25, s25, s24")
    a("s_lshl_b32 s25, s25, 10")
    a("s_waitcnt lgkmcnt(0)")
    srd(a, 8, 4, WS_W2F, W2F_BYTES)
    srd(a, 12, 4, WS_HF, HF_BYTES)
    srd(a, 16, 4, WS_X1F if layer == 0 else WS_X3F, XF_BYTES)
    if layer == 0:
        srd(a, 36, 4, WS_X2F, XF_BYTES)
    else:
        srd(a, 36, 6, 0, XF_BYTES)
    vq = VmQ(a)
    BB, ACC = 16, 64
    last = {}

    def load_step(s):
        if s >= 14:
            return
        st = s % NS
        a(f"s_add_u32 s26, s25, {2048*s}")
        for nt in range(2):
            r = BB + 8 * st + 4 * nt
            vq.issue(f"buffer_load_dwordx4 v[{r}:{r+3}], v4, s[12:15], s26 offen offset:{256*nt}")
        a(f"s_add_u32 s26, s23, {7168*s}")
        a(f"s_add_u32 s27, s23, {7168*s+4096}")
        for mt in range(7):
            r = 28 * st + 4 * mt
            so, off = (26, 1024 * mt) if mt < 4 else (27, 1024 * (mt - 4))
            last[(s, mt)] = vq.issue(f"buffer_load_dwordx4 a[{r}:{r+3}], v3, s[8:11], s{so} offen offset:{off}")

    for s in range(NS):
        load_step(s)
    a("s_mul_i32 s28, s20, 28")
    a("s_mul_i32 s29, s22, 7")
    a("s_add_u32 s28, s28, s29")
    a("s_lshl_b32 s28, s28, 10")
    a("v_lshlrev_b32 v6, 4, v0")
    a("v_add_u32 v7, 4096, v6")
    a("v_cmp_gt_u32 vcc, 192, v0")
    a(f"v_mov_b32 v8, {OOB}")
    a("v_cndmask_b32 v7, v8, v7, vcc")
    if layer == 0:
        a("v_mov_b32 v9, v6")
        a("v_mov_b32 v10, v7")
        a("s_mov_b32 s29, s28")
    else:
        a("v_and_b32 v9, 31, v2")
        a("v_mul_u32_u24 v9, 896, v9")
        a("v_lshrrev_b32 v10, 5, v2")
        a("v_lshl_add_u32 v9, v10, 4, v9")
        a("v_lshl_add_u32 v9, v1, 5, v9")
        a("v_add_u32 v10, 128, v9")
        a("v_cndmask_b32 v10, v8, v10, vcc")
        a(f"s_mul_i32 s29, s20, {32*896}")
        a("s_mul_i32 s30, s22, 224")
        a("s_add_u32 s29, s29, s30")
    a("v_bfe_u32 v11, v2, 4, 1")
    a("v_lshl_add_u32 v11, v1, 1, v11")
    a("v_lshlrev_b32 v11, 10, v11")
    a("v_lshrrev_b32 v12, 5, v2")
    a("v_lshl_add_u32 v11, v12, 9, v11")
    a("v_lshl_add_u32 v11, v5, 4, v11")
    a("s_mul_i32 s30, s3, 14336")
    a("v_add_u32 v12, s30, v3")
    for s in range(14):
        st = s % NS
        for mt in range(7):
            vq.wait(last[(s, mt)])
            for nt in range(2):
                acc = ACC + 4 * (2 * mt + nt)
                ra, rb = 28 * st + 4 * mt, BB + 8 * st + 4 * nt
                src = "0" if s == 0 else f"v[{acc}:{acc+3}]"
                a(f"v_mfma_f32_16x16x32_bf16 v[{acc}:{acc+3}], a[{ra}:{ra+3}], v[{rb}:{rb+3}], {src}")
        load_step(s + NS)
        if s == 14 - NS:
            r0 = vq.issue("buffer_load_dwordx4 v[120:123], v6, s[16:19], s28 offen")
            r1 = vq.issue("buffer_load_dwordx4 v[124:127], v7, s[16:19], s28 offen")
    stamp(a, 1)
    for t in range(14):
        acc = ACC + 4 * t
        a(f"ds_write_b128 v12, v[{acc}:{acc+3}] offset:{1024*t}")
    a("s_waitcnt lgkmcnt(0)")
    a("s_barrier")
    stamp(a, 2)
    for i in range(2):
        for wv in range(4):
            for hh in range(2):
                r = 16 + 32 * i + 8 * wv + 4 * hh
                a(f"ds_read_b128 v[{r}:{r+3}], v11 offset:{wv*14336 + i*8192 + hh*256}")
    vq.wait(r1)
    for i in range(2):
        a(f"s_waitcnt lgkmcnt({8 - 8*i})")
        b = 16 + 32 * i
        for p in range(4):
            a(f"v_pk_add_f32 v[{b+2*p}:{b+2*p+1}], v[{b+2*p}:{b+2*p+1}], v[{b+8+2*p}:{b+9+2*p}]")
            a(f"v_pk_add_f32 v[{b+16+2*p}:{b+17+2*p}], v[{b+16+2*p}:{b+17+2*p}], v[{b+24+2*p}:{b+25+2*p}]")
        for p in range(4):
            a(f"v_pk_add_f32 v[{b+2*p}:{b+2*p+1}], v[{b+2*p}:{b+2*p+1}], v[{b+16+2*p}:{b+17+2*p}]")
        for p in range(4):
            a(f"v_cvt_pk_bf16_f32 v{b+8+p}, v{b+2*p}, v{b+2*p+1}")
        for p in range(4):
            unpack(a, b + 2 * p, b + 8 + p, 0)
            unpack(a, b + 2 * p + 1, b + 8 + p, 1)
            unpack(a, b + 16 + 2 * p, 120 + 4 * i + p, 0)
            unpack(a, b + 17 + 2 * p, 120 + 4 * i + p, 1)
        for p in range(4):
            a(f"v_pk_add_f32 v[{b+2*p}:{b+2*p+1}], v[{b+2*p}:{b+2*p+1}], v[{b+16+2*p}:{b+17+2*p}]")
        for p in range(4):
            a(f"v_cvt_pk_bf16_f32 v{b+8+p}, v{b+2*p}, v{b+2*p+1}")
        a(f"buffer_store_dwordx4 v[{b+8}:{b+11}], v{9+i}, s[36:39], s29 offen")
    stamp(a, 3)
    stamp_flush(a, kidx)
    a.label(f"{name}_exit")
    a("s_endpgm")
    return dict(name=name, grid=256, block=256, lds=G2_LDS, vgpr=128, agpr=28 * NS, sgpr=100)


def gen_g1a(a):
    return gen_g1(a, "g1a_kernel", 0, 2)


def gen_g2a(a):
    return gen_g2(a, "g2a_kernel", 0, 3)


def gen_g1b(a):
    return gen_g1(a, "g1b_kernel", 1, 4)


def gen_g2b(a):
    return gen_g2(a, "g2b_kernel", 1, 5)
```

```python
from asmlib import *
from layout import *

KA = dict(q=0, k=8, v=16, shift=24, ssmk=32, ssmD=40, bx=48, wg=56, wu=64, wd=72, out=80, dbg=88, ws=96)
OOB = 0x80000000


def srd(a, d, lo, off, size):
    if off:
        a(f"s_add_u32 s{d}, s{lo}, {off}")
        a(f"s_addc_u32 s{d+1}, s{lo+1}, 0")
    else:
        a(f"s_mov_b32 s{d}, s{lo}")
        a(f"s_mov_b32 s{d+1}, s{lo+1}")
    a(f"s_mov_b32 s{d+2}, {size}")
    a(f"s_mov_b32 s{d+3}, 0x00020000")


def unpack(a, dst, src, half):
    if half == 0:
        a(f"v_lshlrev_b32 v{dst}, 16, v{src}")
    else:
        a(f"v_and_b32 v{dst}, 0xffff0000, v{src}")


def bf16r(a, dst, src):
    a(f"v_cvt_pk_bf16_f32 v{dst}, v{src}, v{src}")
    a(f"v_lshlrev_b32 v{dst}, 16, v{dst}")


N_W1, N_W2, N_KV, N_LN = 112, 56, 224, 256
PREP_GRID = N_W1 + N_W2 + N_KV + N_LN
PREP_LDS = 36864


def gen_prep(a, name="prep_kernel"):
    a.label(name)
    a(f"s_load_dwordx2 s[4:5], s[0:1], {KA['ws']}")
    a("v_lshrrev_b32 v1, 6, v0")
    a("v_readfirstlane_b32 s3, v1")
    a("v_and_b32 v2, 63, v0")
    a(f"s_cmp_lt_u32 s2, {N_W1}")
    a("s_cbranch_scc1 prep_w1")
    a(f"s_cmp_lt_u32 s2, {N_W1+N_W2}")
    a("s_cbranch_scc1 prep_w2")
    a(f"s_cmp_lt_u32 s2, {N_W1+N_W2+N_KV}")
    a("s_cbranch_scc1 prep_kv")
    a(f"s_cmp_lt_u32 s2, {PREP_GRID}")
    a("s_cbranch_scc1 prep_ln")
    a("s_endpgm")

    a.label("prep_ln")
    a(f"s_load_dwordx2 s[6:7], s[0:1], {KA['q']}")
    a(f"s_sub_u32 s2, s2, {N_W1+N_W2+N_KV}")
    a("s_lshl_b32 s20, s2, 3")
    a("s_lshl_b32 s21, s3, 1")
    a("s_add_u32 s20, s20, s21")
    a("v_and_b32 v3, 1, v2")
    a("v_add_u32 v3, s20, v3")
    a("v_lshrrev_b32 v4, 1, v2")
    a("s_movk_i32 s21, 896")
    a("v_mul_lo_u32 v5, v3, s21")
    a("v_lshl_add_u32 v5, v4, 4, v5")
    a("v_lshrrev_b32 v6, 5, v3")
    a("s_movk_i32 s21, 28672")
    a("v_mul_lo_u32 v6, v6, s21")
    a("v_lshl_add_u32 v6, v4, 9, v6")
    a("v_and_b32 v7, 31, v3")
    a("v_lshl_add_u32 v6, v7, 4, v6")
    a("v_cmp_gt_u32 vcc, 28, v4")
    a(f"v_mov_b32 v7, {OOB}")
    a("v_cndmask_b32 v5, v7, v5, vcc")
    a("v_cndmask_b32 v6, v7, v6, vcc")
    a("s_mov_b64 s[22:23], vcc")
    a("s_waitcnt lgkmcnt(0)")
    srd(a, 8, 6, 0, XF_BYTES)
    srd(a, 12, 4, WS_X0F, XF_BYTES)
    srd(a, 16, 4, WS_XN0F, XF_BYTES)
    a("buffer_load_dwordx4 v[8:11], v5, s[8:11], 0 offen")
    a("buffer_load_dwordx4 v[12:15], v5, s[8:11], 0 offen offset:448")
    a("s_movk_i32 s21, 14336")
    a("s_waitcnt vmcnt(0)")
    a("buffer_store_dwordx4 v[8:11], v6, s[12:15], 0 offen")
    a("buffer_store_dwordx4 v[12:15], v6, s[12:15], s21 offen")
    for i in range(16):
        unpack(a, 16 + i, 8 + i // 2, i & 1)

    def allreduce(v, t):
        for rot in (8, 4, 2):
            a(f"v_add_f32_dpp v{v}, v{v}, v{v} row_ror:{rot} row_mask:0xf bank_mask:0xf")
        a(f"ds_swizzle_b32 v{t}, v{v} offset:0x401F")
        a("s_waitcnt lgkmcnt(0)")
        a(f"v_add_f32 v{v}, v{v}, v{t}")
        a(f"v_mov_b32 v{t}, v{v}")
        a(f"v_permlane32_swap_b32 v{v}, v{t}")
        a(f"v_add_f32 v{v}, v{v}, v{t}")

    a("v_add_f32 v32, v16, v17")
    a("v_add_f32 v33, v18, v19")
    for i in range(4, 16, 2):
        a(f"v_add_f32 v32, v32, v{16+i}")
        a(f"v_add_f32 v33, v33, v{17+i}")
    a("v_add_f32 v32, v32, v33")
    allreduce(32, 33)
    a(f"v_mul_f32 v32, {float_hex(1.0/448)}, v32")
    a("v_mov_b32 v34, 0")
    a("v_mov_b32 v35, 0")
    for i in range(0, 16, 2):
        a(f"v_sub_f32 v36, v{16+i}, v32")
        a(f"v_sub_f32 v37, v{17+i}, v32")
        a("v_fmac_f32 v34, v36, v36")
        a("v_fmac_f32 v35, v37, v37")
    a("v_add_f32 v34, v34, v35")
    a("v_cndmask_b32 v34, 0, v34, s[22:23]")
    allreduce(34, 33)
    a(f"v_mul_f32 v34, {float_hex(1.0/448)}, v34")
    bf16r(a, 32, 32)
    bf16r(a, 34, 34)
    a(f"v_add_f32 v34, {float_hex(1e-5)}, v34")
    bf16r(a, 34, 34)
    a("v_sqrt_f32 v34, v34")
    bf16r(a, 34, 34)
    a("v_rcp_f32 v34, v34")
    for i in range(0, 16, 2):
        a(f"v_sub_f32 v{16+i}, v{16+i}, v32")
        a(f"v_sub_f32 v{17+i}, v{17+i}, v32")
        a(f"v_cvt_pk_bf16_f32 v36, v{16+i}, v{17+i}")
        unpack(a, 16 + i, 36, 0)
        unpack(a, 17 + i, 36, 1)
        a(f"v_mul_f32 v{16+i}, v{16+i}, v34")
        a(f"v_mul_f32 v{17+i}, v{17+i}, v34")
        a(f"v_cvt_pk_bf16_f32 v{40+i//2}, v{16+i}, v{17+i}")
    a("buffer_store_dwordx4 v[40:43], v6, s[16:19], 0 offen")
    a("buffer_store_dwordx4 v[44:47], v6, s[16:19], s21 offen")
    a("s_endpgm")

    a.label("prep_kv")
    a(f"s_load_dwordx4 s[24:27], s[0:1], {KA['k']}")
    a(f"s_load_dwordx2 s[28:29], s[0:1], {KA['shift']}")
    a(f"s_sub_u32 s2, s2, {N_W1+N_W2}")
    a("s_and_b32 s20, s2, 31")
    a("s_lshr_b32 s21, s2, 5")
    a("v_and_b32 v3, 7, v0")
    a("v_lshrrev_b32 v4, 3, v0")
    a("s_lshl_b32 s22, s20, 6")
    a("v_lshl_add_u32 v5, v4, 1, s22")
    a("s_movk_i32 s23, 896")
    a("v_mul_lo_u32 v5, v5, s23")
    a("s_lshl_b32 s22, s21, 7")
    a("v_lshl_add_u32 v6, v3, 4, s22")
    a("v_add_u32 v5, v5, v6")
    a(f"v_mov_b32 v10, {OOB}")
    for r in range(3):
        a(f"v_subrev_u32 v{7+r}, {896*(3-r)}, v5")
        a(f"v_cmp_gt_i32 vcc, 0, v{7+r}")
        a(f"v_cndmask_b32 v{7+r}, v{7+r}, v10, vcc")
    a("v_lshlrev_b32 v11, 2, v6")
    a("s_waitcnt lgkmcnt(0)")
    srd(a, 8, 24, 0, XF_BYTES)
    srd(a, 12, 26, 0, XF_BYTES)
    srd(a, 16, 28, 0, D * 8)
    srd(a, 32, 4, WS_KVT, D * KVT_STRIDE)
    for r in range(3):
        a(f"buffer_load_dwordx4 v[{16+4*r}:{19+4*r}], v{7+r}, s[8:11], 0 offen")
    a("buffer_load_dwordx4 v[28:31], v5, s[8:11], 0 offen")
    a("buffer_load_dwordx4 v[32:35], v5, s[8:11], 0 offen offset:896")
    a("buffer_load_dwordx4 v[36:39], v5, s[12:15], 0 offen")
    a("buffer_load_dwordx4 v[40:43], v5, s[12:15], 0 offen offset:896")
    for i in range(4):
        a(f"buffer_load_dwordx4 v[{44+4*i}:{47+4*i}], v11, s[16:19], 0 offen offset:{16*i}")
    a("v_mul_u32_u24 v12, 1056, v3")
    a("v_lshl_add_u32 v12, v4, 2, v12")
    a("s_waitcnt vmcnt(0)")
    for c in range(8):
        dw, hf = c >> 1, c & 1
        for r in range(5):
            unpack(a, 60 + r, 16 + 4 * r + dw, hf)
        for tpi in range(4):
            unpack(a, 65 + tpi, 44 + 2 * c + (tpi >> 1), tpi & 1)
        unpack(a, 69, 36 + dw, hf)
        unpack(a, 70, 40 + dw, hf)
        for tk in range(2):
            a(f"v_mul_f32 v{71+tk}, v{60+tk}, v68")
            a(f"v_fmac_f32 v{71+tk}, v{61+tk}, v67")
            a(f"v_fmac_f32 v{71+tk}, v{62+tk}, v66")
            a(f"v_fmac_f32 v{71+tk}, v{63+tk}, v65")
        a("v_cvt_pk_bf16_f32 v73, v71, v72")
        unpack(a, 71, 73, 0)
        unpack(a, 72, 73, 1)
        a("v_mul_f32 v71, v71, v69")
        a("v_mul_f32 v72, v72, v70")
        a(f"v_cvt_pk_bf16_f32 v{74+c}, v71, v72")
        a(f"ds_write_b32 v12, v{74+c} offset:{132*c}")
    a("s_waitcnt lgkmcnt(0)")
    a("s_barrier")
    a("v_mul_u32_u24 v12, 132, v4")
    a("v_lshl_add_u32 v12, v3, 4, v12")
    a("ds_read2_b32 v[16:17], v12 offset0:0 offset1:1")
    a("ds_read2_b32 v[18:19], v12 offset0:2 offset1:3")
    a(f"v_add_u32 v13, {32*132}, v12")
    a("ds_read2_b32 v[20:21], v13 offset0:0 offset1:1")
    a("ds_read2_b32 v[22:23], v13 offset0:2 offset1:3")
    a("s_lshl_b32 s22, s21, 6")
    a("v_add_u32 v5, s22, v4")
    a(f"s_movk_i32 s23, {KVT_STRIDE}")
    a("v_mul_lo_u32 v5, v5, s23")
    a("v_lshl_add_u32 v5, v3, 4, v5")
    a("s_lshl_b32 s22, s20, 7")
    a("s_add_u32 s22, s22, 32")
    a(f"s_add_u32 s23, s22, {32*KVT_STRIDE}")
    a("s_waitcnt lgkmcnt(0)")
    a("buffer_store_dwordx4 v[16:19], v5, s[32:35], s22 offen")
    a("buffer_store_dwordx4 v[20:23], v5, s[32:35], s23 offen")
    a("s_cmp_lg_u32 s20, 0")
    a("s_cbranch_scc1 prep_kv_done")
    a("v_cmp_gt_u32 vcc, 2, v3")
    a("v_cndmask_b32 v6, v10, v5, vcc")
    a("v_mov_b32 v24, 0")
    a("v_mov_b32 v25, 0")
    a("v_mov_b32 v26, 0")
    a("v_mov_b32 v27, 0")
    a(f"s_mov_b32 s23, {32*KVT_STRIDE}")
    a("buffer_store_dwordx4 v[24:27], v6, s[32:35], 0 offen")
    a("buffer_store_dwordx4 v[24:27], v6, s[32:35], s23 offen")
    a.label("prep_kv_done")
    a("s_endpgm")

    RS, MS = 160, 112 * 160 + 128
    a.label("prep_w1")
    a(f"s_load_dwordx4 s[24:27], s[0:1], {KA['wg']}")
    a("s_lshr_b32 s20, s2, 2")
    a("s_and_b32 s21, s2, 3")
    a("v_and_b32 v3, 7, v0")
    a("v_bfe_u32 v4, v0, 3, 4")
    a("s_mul_i32 s22, s21, 112")
    a("v_add_u32 v5, s22, v4")
    a("s_movk_i32 s23, 3584")
    a("v_mul_lo_u32 v5, v5, s23")
    a("s_lshl_b32 s22, s20, 7")
    a("v_lshl_add_u32 v6, v3, 4, s22")
    a("v_add_u32 v5, v5, v6")
    a("s_lshr_b32 s30, s3, 1")
    a(f"s_mul_i32 s22, s30, {MS}")
    a(f"v_mul_u32_u24 v6, {RS}, v4")
    a("v_lshl_add_u32 v6, v3, 4, v6")
    a("v_add_u32 v6, s22, v6")
    a("s_waitcnt lgkmcnt(0)")
    a("s_cmp_eq_u32 s30, 0")
    a("s_cselect_b32 s28, s24, s26")
    a("s_cselect_b32 s29, s25, s27")
    srd(a, 8, 28, 0, D * F * 2)
    srd(a, 12, 4, WS_W1F, W1F_BYTES)
    for i in range(7):
        a(f"s_mov_b32 s22, {i*16*3584}")
        a(f"buffer_load_dwordx4 v[{16+4*i}:{19+4*i}], v5, s[8:11], s22 offen")
    a("v_lshrrev_b32 v7, 4, v2")
    a("v_bfe_u32 v8, v2, 2, 2")
    a("v_and_b32 v9, 3, v2")
    a("v_lshrrev_b32 v10, 1, v9")
    a(f"v_mul_u32_u24 v10, {MS}, v10")
    a("v_lshrrev_b32 v11, 1, v7")
    a("v_lshl_add_u32 v11, v11, 3, v8")
    a(f"v_mul_u32_u24 v11, {RS}, v11")
    a("v_add_u32 v10, v10, v11")
    a("v_and_b32 v11, 1, v7")
    a("v_lshl_add_u32 v10, v11, 4, v10")
    a("v_and_b32 v11, 1, v9")
    a("v_lshl_add_u32 v10, v11, 3, v10")
    a("s_lshl_b32 s22, s3, 5")
    a("v_add_u32 v10, s22, v10")
    a("s_lshl_b32 s22, s20, 2")
    a("s_add_u32 s22, s22, s3")
    a("s_mul_i32 s23, s22, 9363")
    a("s_lshr_b32 s23, s23, 16")
    a("s_mul_i32 s31, s23, 7")
    a("s_sub_u32 s22, s22, s31")
    a("s_mul_i32 s23, s23, 203")
    a("s_add_u32 s22, s22, s23")
    a("s_lshl_b32 s33, s22, 10")
    a(f"s_mul_i32 s23, s21, {7*7*1024}")
    a("s_add_u32 s32, s33, s23")
    a("v_lshlrev_b32 v11, 4, v2")
    for i in range(7):
        a(f"s_waitcnt vmcnt({6-i})")
        a(f"ds_write_b128 v6, v[{16+4*i}:{19+4*i}] offset:{i*16*RS}")
    a("s_waitcnt lgkmcnt(0)")
    a("s_barrier")
    for i in range(7):
        a(f"ds_read_b64_tr_b16 v[{16+4*i}:{17+4*i}], v10 offset:{i*16*RS}")
        a(f"ds_read_b64_tr_b16 v[{18+4*i}:{19+4*i}], v10 offset:{i*16*RS+4*RS}")
    a("v_mov_b32 v12, 0")
    a("s_mov_b32 s34, 0x3f803f80")
    for i in range(7):
        a(f"s_waitcnt lgkmcnt({12-2*i})")
        a(f"buffer_store_dwordx4 v[{16+4*i}:{19+4*i}], v11, s[12:15], s32 offen")
        a("s_add_u32 s32, s32, 7168")
        for d4 in range(4):
            a(f"v_dot2_f32_bf16 v12, v{16+4*i+d4}, s34, v12")
    a("v_mov_b32 v13, v12")
    a("v_permlane32_swap_b32 v12, v13")
    a("v_add_f32 v12, v12, v13")
    bf16r(a, 13, 12)
    a("v_sub_f32 v12, v12, v13")
    bf16r(a, 14, 12)
    a("v_sub_f32 v12, v12, v14")
    a("v_cvt_pk_bf16_f32 v44, v13, v14")
    a("v_cvt_pk_bf16_f32 v45, v12, 0")
    a("s_lshr_b32 s22, s21, 1")
    a("s_lshl_b32 s22, s22, 9")
    a("s_and_b32 s23, s21, 1")
    a("s_lshl_b32 s23, s23, 3")
    a("s_add_u32 s22, s22, s23")
    a(f"s_add_u32 s22, s22, {28*7168}")
    a("s_add_u32 s22, s22, s33")
    a("v_cmp_gt_u32 vcc, 32, v2")
    a(f"v_mov_b32 v15, {OOB}")
    a("v_cndmask_b32 v11, v15, v11, vcc")
    a("buffer_store_dwordx2 v[44:45], v11, s[12:15], s22 offen")
    a("s_endpgm")

    RS2 = 928
    a.label("prep_w2")
    a(f"s_load_dwordx2 s[24:25], s[0:1], {KA['wd']}")
    a(f"s_sub_u32 s2, s2, {N_W1}")
    a("s_mul_i32 s20, s2, 28672")
    a("v_lshlrev_b32 v5, 4, v0")
    a("s_waitcnt lgkmcnt(0)")
    srd(a, 8, 24, 0, D * F * 2)
    srd(a, 12, 4, WS_W2F, W2F_BYTES)
    for i in range(7):
        a(f"buffer_load_dwordx4 v[{16+4*i}:{19+4*i}], v5, s[8:11], s20 offen")
        a("s_add_u32 s20, s20, 4096")
    for i in range(7):
        a(f"v_add_u32 v6, {256*i}, v0")
        a("v_mul_u32_u24 v7, 9363, v6")
        a("v_lshrrev_b32 v7, 19, v7")
        a("v_lshlrev_b32 v7, 5, v7")
        a(f"v_lshl_add_u32 v{48+i}, v6, 4, v7")
    a("v_lshrrev_b32 v7, 4, v2")
    a("v_bfe_u32 v8, v2, 2, 2")
    a("v_and_b32 v9, 3, v2")
    a("v_lshrrev_b32 v10, 1, v7")
    a("v_lshl_add_u32 v10, v10, 4, v8")
    a("v_and_b32 v11, 1, v7")
    a("v_lshl_add_u32 v10, v11, 2, v10")
    a(f"v_mul_u32_u24 v10, {RS2}, v10")
    a("v_lshl_add_u32 v10, v9, 3, v10")
    a("s_mul_i32 s22, s3, 224")
    a("v_add_u32 v10, s22, v10")
    a("s_mul_i32 s22, s3, 56")
    a("s_add_u32 s22, s22, s2")
    a("s_mul_i32 s22, s22, 7168")
    a("v_lshlrev_b32 v11, 4, v2")
    for i in range(7):
        a(f"s_waitcnt vmcnt({6-i})")
        a(f"ds_write_b128 v{48+i}, v[{16+4*i}:{19+4*i}]")
    a("s_waitcnt lgkmcnt(0)")
    a("s_barrier")
    for i in range(7):
        a(f"ds_read_b64_tr_b16 v[{16+4*i}:{17+4*i}], v10 offset:{32*i}")
        a(f"ds_read_b64_tr_b16 v[{18+4*i}:{19+4*i}], v10 offset:{32*i+8*RS2}")
    for i in range(7):
        a(f"s_waitcnt lgkmcnt({12-2*i})")
        if i < 4:
            a(f"buffer_store_dwordx4 v[{16+4*i}:{19+4*i}], v11, s[12:15], s22 offen offset:{1024*i}")
        else:
            if i == 4:
                a("s_add_u32 s22, s22, 4096")
            a(f"buffer_store_dwordx4 v[{16+4*i}:{19+4*i}], v11, s[12:15], s22 offen offset:{1024*(i-4)}")
    a("s_endpgm")
    return dict(name=name, grid=PREP_GRID, block=256, lds=PREP_LDS, vgpr=88, agpr=0, sgpr=40)


def float_hex(x):
    import struct
    return hex(struct.unpack("<I", struct.pack("<f", x))[0])


import os
PROFILE = bool(int(os.environ.get("PROFILE", "0")))
WS_PROF = 40 * MB


def stamp(a, i):
    if PROFILE:
        a(f"s_memtime s[{76+2*i}:{77+2*i}]")
        a("s_waitcnt lgkmcnt(0)")


def stamp_flush(a, kidx, n=10):
    if not PROFILE:
        return
    a("s_waitcnt vmcnt(0)")
    a(f"s_memtime s[{76+2*(n-1)}:{77+2*(n-1)}]")
    a("s_memrealtime s[72:73]")
    a("s_waitcnt lgkmcnt(0)")
    srd(a, 68, 4, WS_PROF + kidx * 262144, 262144)
    a("s_lshl_b32 s74, s2, 2")
    a("s_add_u32 s74, s74, s3")
    a("s_lshl_b32 s74, s74, 6")
    a("v_mov_b32 v0, 0")
    for i in range(n):
        a(f"v_mov_b32 v1, s{76+2*i}")
        a(f"buffer_store_dword v1, v0, s[68:71], s74 offen offset:{4*i}")
    a("v_mov_b32 v1, s72")
    a(f"buffer_store_dword v1, v0, s[68:71], s74 offen offset:{4*n}")
```

```python
import numpy as np

MB = 1 << 20
S, D, F = 2048, 448, 1792
XF_BYTES = S * D * 2
KVT_STRIDE = 4224
WS_KVT = 0
WS_X0F = 2 * MB
WS_XN0F = 4 * MB
WS_YF = 6 * MB
WS_X1F = 8 * MB
WS_X2F = 10 * MB
WS_X3F = 12 * MB
WS_HF = 16 * MB
HF_BYTES = S * F * 2
WS_W1F = 24 * MB
W1F_BYTES = 16 * 29 * 7 * 1024
WS_W2F = 28 * MB
W2F_BYTES = 4 * 56 * 7 * 1024


def to_xf(x):
    a = x.reshape(64, 32, 28, 2, 8)
    return a.transpose(0, 2, 3, 1, 4).reshape(-1)


def to_hf(h):
    a = h.reshape(64, 32, 112, 2, 2, 4)
    return a.transpose(0, 2, 4, 1, 3, 5).reshape(-1)


def w1f_expected(Wg, Wu):
    W = np.stack([Wg, Wu])
    a = W.reshape(2, 28, 2, 8, 16, 7, 2, 2, 4)
    return a.transpose(4, 1, 5, 2, 6, 0, 7, 8, 3).reshape(16, 28, 7, 64, 8)


def w2f_expected(Wd):
    a = Wd.reshape(56, 2, 2, 2, 4, 4, 7, 16)
    return a.transpose(5, 0, 6, 1, 3, 7, 2, 4).reshape(-1)
```

```python
import sys, os
sys.path.insert(0, os.path.dirname(os.path.abspath(__file__)))
from asmlib import *
from layout import *

NAME = "interleave_layers__ssm_conv_h3__glu_gated_reglu__prompt"
REF = f"cdna_kernels/{NAME}.s.ref"


def build(kernel_gens, launches=None):
    hdr = open(REF).read().split("; Override launch")[0]
    infos = {}
    body = ""
    for g in kernel_gens:
        a = Asm()
        info = g(a)
        infos[info["name"]] = info
        body += f".globl {info['name']}\n.p2align 8\n.type {info['name']},@function\n" + a.finish()
    if launches is None:
        launches = list(infos.keys())
    out = hdr
    for n in launches:
        i = infos[n]
        out += f"; @launch kernel={n} grid=({i['grid']},1,1) block=({i['block']},1,1) lds={i['lds']}\n"
    out += '.amdgcn_target "amdgcn-amd-amdhsa--gfx950"\n.text\n' + body
    out += '.section .rodata,"a"\n'
    for n, i in infos.items():
        acc = (i["vgpr"] + 3) // 4 * 4
        nfv = acc + i["agpr"] if i["agpr"] else i["vgpr"]
        out += f""".p2align 6
.amdhsa_kernel {n}
  .amdhsa_next_free_vgpr {nfv}
  .amdhsa_next_free_sgpr {i['sgpr']}
  .amdhsa_accum_offset {acc}
  .amdhsa_group_segment_fixed_size 0
  .amdhsa_kernarg_size 104
  .amdhsa_user_sgpr_count 2
  .amdhsa_user_sgpr_kernarg_segment_ptr 1
  .amdhsa_system_sgpr_workgroup_id_x 1
.end_amdhsa_kernel
"""
    return out


if __name__ == "__main__":
    from k_prep import gen_prep
    gens = [gen_prep]
    try:
        from k_conv import gen_conv
        gens.append(gen_conv)
        from k_ffn import gen_g1a, gen_g2a, gen_g1b, gen_g2b
        gens += [gen_g1a, gen_g2a, gen_g1b, gen_g2b]
    except ImportError as e:
        print("partial build:", e)
    out = sys.argv[1] if len(sys.argv) > 1 else "out.s"
    open(out, "w").write(build(gens))
    print("wrote", out)
```

```python
import sys
from gen import *
from k_prep import gen_prep
from k_conv import gen_conv
from k_ffn import gen_g1a, gen_g2a, gen_g1b, gen_g2b
def gen_empty(a):
    a.label("empty_kernel")
    a("s_endpgm")
    return dict(name="empty_kernel", grid=256, block=256, lds=0, vgpr=8, agpr=0, sgpr=16)
gens=[gen_prep, gen_conv, gen_g1a, gen_g2a, gen_g1b, gen_g2b, gen_empty]
base=["prep_kernel","conv_kernel","g1a_kernel","g2a_kernel","g1b_kernel","g2b_kernel"]
open("var_e6.s","w").write(build(gens, base+["empty_kernel"]*6))
open("var_e0.s","w").write(build(gens, base))
open("var_dup.s","w").write(build(gens, base+base[2:]))
```
